```python
import torch

def _softmax(x, axis=-1):
    return torch.softmax(x, dim=axis)
def _gelu(x):
    return torch.nn.functional.gelu(x, approximate="tanh")
def _silu(x):
    return torch.nn.functional.silu(x)
def _sigmoid(x):
    return torch.sigmoid(x)
def _layernorm(x, axis=-1, eps=1e-5):
    m = x.mean(dim=axis, keepdim=True)
    v = x.var(dim=axis, keepdim=True, unbiased=False)
    return (x - m) / torch.sqrt(v + eps)
def _scatter_add(tgt, idx, src, axis=0):
    return tgt.clone().index_add_(axis, idx, src)
def _segment_sum(src, seg, n):
    out = torch.zeros((n,) + src.shape[1:], dtype=src.dtype)
    return out.index_add_(0, seg, src)
def _pad(x, pw):
    flat = tuple(v for pair in reversed(pw) for v in pair)
    return torch.nn.functional.pad(x, flat)

kernel_name = 'interleave_layers__ssm_conv_h3__glu_gated_geglu__prompt'

def setup_inputs():

    _w = (lambda a: (lambda t: t.to(torch.bfloat16) if t.is_floating_point() else t)(torch.as_tensor(a)))
    def _A_setup():
        B, S, D = 1, 2048, 512
        ks = 4
        return {
            "q": _w((lambda *s: torch.randn(*s, dtype=torch.bfloat16) * 0.05)(B, S, D)),
            "k": _w((lambda *s: torch.randn(*s, dtype=torch.bfloat16) * 0.2)(B, S, D)),
            "v": _w((lambda *s: torch.randn(*s, dtype=torch.bfloat16) * 0.2)(B, S, D)),
            "shift_k": _w((lambda *s: torch.randn(*s, dtype=torch.bfloat16) * 0.2)(D, ks) * 0.5),
            "ssm_k": _w((lambda *s: torch.randn(*s, dtype=torch.bfloat16) * 0.4)(D, S) * (1.0 / S ** 0.5)),
            "ssm_D": _w((lambda *s: torch.randn(*s, dtype=torch.bfloat16) * 0.2)(D)),
        }
    _A_in = _A_setup()

    def _B_setup():
        B, S, Dm, Df = 1, 2048, 512, 1792
        return {
            "x": _w((lambda *s: torch.randn(*s, dtype=torch.bfloat16) * 0.05)(B, S, Dm)),
            "w_gate": _w((lambda *s: torch.randn(*s, dtype=torch.bfloat16) * 0.4)(Dm, Df) * (Dm ** -0.5)),
            "w_up": _w((lambda *s: torch.randn(*s, dtype=torch.bfloat16) * 0.4)(Dm, Df) * (Dm ** -0.5)),
            "w_down": _w((lambda *s: torch.randn(*s, dtype=torch.bfloat16) * 0.4)(Df, Dm) * (Df ** -0.5)),
        }
    _B_in = _B_setup()

    return {
        "A_q": _A_in["q"],
        "A_k": _A_in["k"],
        "A_v": _A_in["v"],
        "A_shift_k": _A_in["shift_k"],
        "A_ssm_k": _A_in["ssm_k"],
        "A_ssm_D": _A_in["ssm_D"],
        "B_x": _B_in["x"],
        "B_w_gate": _B_in["w_gate"],
        "B_w_up": _B_in["w_up"],
        "B_w_down": _B_in["w_down"],
    }

def reference(A_q, A_k, A_v, A_shift_k, A_ssm_k, A_ssm_D, B_x, B_w_gate, B_w_up, B_w_down):
    def _A_ref(q, k, v, shift_k, ssm_k, ssm_D):
        B, S, D = q.shape
        ks = shift_k.shape[-1]
        k_pad = _pad(k, ((0, 0), (ks - 1, 0), (0, 0)))
        k_shift = torch.zeros_like(k)
        for t in range(ks):
            k_shift = k_shift + k_pad[:, t:t + S, :] * shift_k[:, ks - 1 - t][None, None, :]
        kv = k_shift * v
        L = 2 * S
        kv_pad = _pad(kv, ((0, 0), (0, S), (0, 0)))
        kf_pad = _pad(ssm_k, ((0, 0), (0, S)))
        kv_f = (lambda x, axes=(-2,-1): torch.fft.rfft2(x.float(), dim=axes))(kv_pad[:, None, :, :], axes=(1, 2))
        kf_f = (lambda x, axes=(-2,-1): torch.fft.rfft2(x.float(), dim=axes))(kf_pad[:, None, :], axes=(1, 2))
        kf_f = (lambda x, *d: x.permute(*d))(kf_f, 1, 2, 0)
        y_f = kv_f * kf_f[None, :, :, :]
        y = (lambda x, s, axes=(-2,-1): torch.fft.irfft2(x, s=s, dim=axes).to(torch.bfloat16))(y_f, (1, L), axes=(1, 2))[:, 0, :S, :]
        y = y + kv * ssm_D[None, None, :]
        return q * y

    def _B_ref(x, w_gate, w_up, w_down):
        g = torch.einsum("bsd,df->bsf", x, w_gate)
        u = torch.einsum("bsd,df->bsf", x, w_up)
        h = _gelu(g) * u
        return torch.einsum("bsf,fd->bsd", h, w_down)

    x = A_q
    x = x + _A_ref(_layernorm(x, axis=-1), A_k, A_v, A_shift_k, A_ssm_k, A_ssm_D)
    x = x + _B_ref(_layernorm(x, axis=-1), B_w_gate, B_w_up, B_w_down)
    x = x + _A_ref(_layernorm(x, axis=-1), A_k, A_v, A_shift_k, A_ssm_k, A_ssm_D)
    x = x + _B_ref(_layernorm(x, axis=-1), B_w_gate, B_w_up, B_w_down)
    return x
```

```python
import re

class Asm:
    def __init__(self):
        self.lines = []
    def __call__(self, s):
        for l in s.split('\n'):
            l = l.strip()
            if l: self.lines.append(l)
    def label(self, name):
        self.lines.append(name + ':')
    def comment(self, s):
        self.lines.append('; ' + s)
    def text(self):
        out = []
        for l in self.lines:
            if l.endswith(':') or l.startswith(';') or l.startswith('.'):
                out.append(l)
            else:
                out.append('    ' + l)
        return '\n'.join(out) + '\n'

def vr(a, n=1):
    return f"v{a}" if n == 1 else f"v[{a}:{a+n-1}]"
def ar(a, n=1):
    return f"a{a}" if n == 1 else f"a[{a}:{a+n-1}]"
def sr(a, n=1):
    return f"s{a}" if n == 1 else f"s[{a}:{a+n-1}]"

_reg_re = re.compile(r'^-?\|?(?:abs\()?([vas])(?:(\d+)|\[(\d+):(\d+)\])\)?\|?$')
def regs_of(op):
    op = op.strip()
    if op in ('vcc',): return {('s','vcc')}
    if op in ('vcc_lo','vcc_hi'): return {('s','vcc')}
    if op == 'exec': return {('s','exec')}
    if op == 'm0': return {('s','m0')}
    m = _reg_re.match(op)
    if not m: return set()
    k = m.group(1)
    if m.group(2) is not None: return {(k, int(m.group(2)))}
    return {(k, i) for i in range(int(m.group(3)), int(m.group(4))+1)}

TRANS = ('v_exp_f32','v_log_f32','v_rcp_f32','v_rsq_f32','v_sqrt_f32','v_sin_f32','v_cos_f32','v_rcp_iflag_f32')
def split_ops(rest):
    ops, depth, cur = [], 0, ''
    for ch in rest:
        if ch == '[': depth += 1
        if ch == ']': depth -= 1
        if ch == ',' and depth == 0:
            ops.append(cur.strip()); cur = ''
        else: cur += ch
    if cur.strip(): ops.append(cur.strip())
    return ops

class Ins:
    def __init__(self, line, idx):
        self.line = line; self.idx = idx
        line = line.split(';')[0].strip()
        p = line.split(None, 1)
        self.mn = p[0]
        rest = p[1] if len(p) > 1 else ''
        ops = split_ops(rest)
        mods = []
        if ops:
            q = ops[-1].split()
            ops[-1] = q[0]; mods = q[1:]
        self.ops = ops; self.mods = mods
        mn = self.mn
        self.kind = 'other'
        self.wr = set(); self.rd = set()
        R = lambda i: regs_of(ops[i]) if i < len(ops) else set()
        if mn.startswith('v_mfma'):
            self.kind = 'mfma'; self.wr = R(0); self.a = R(1); self.b = R(2); self.c = R(3); self.rd = self.a | self.b | self.c
            self.passes = 8 if '32x32' in mn else 4
        elif mn.startswith('v_cmp'):
            self.kind = 'valu'; self.wr = R(0); self.rd = R(1) | R(2)
            if mn.startswith('v_cmpx'): self.wr |= {('s','exec')}
        elif mn.startswith('v_readfirstlane') or mn.startswith('v_readlane'):
            self.kind = 'valu'; self.wr = R(0); self.rd = R(1) | R(2); self.readlane = True
        elif mn.startswith('v_permlane32_swap') or mn.startswith('v_permlane16_swap'):
            self.kind = 'valu'; self.wr = R(0) | R(1); self.rd = R(0) | R(1); self.permlane = True
        elif mn.startswith('v_'):
            self.kind = 'valu'; self.wr = R(0)
            self.rd = set()
            for i in range(1, len(ops)): self.rd |= R(i)
            if mn.startswith(('v_fmac','v_dot2c','v_pk_fmac','v_mac')): self.rd |= R(0)
            if mn.startswith(('v_add_co','v_sub_co','v_addc_co','v_subb_co')):
                self.wr |= R(1); self.rd = R(2) | R(3) | R(4)
            if mn.startswith('v_cndmask') and len(ops) == 3: self.rd |= {('s','vcc')}
            if any(m.startswith(('row_','quad_perm','wave_','row_bcast')) for m in mods): self.dpp = True
        elif mn.startswith('ds_read') or mn.startswith('ds_bpermute') or mn.startswith('ds_swizzle') or mn.startswith('ds_permute'):
            self.kind = 'ds'; self.wr = R(0); self.rd = R(1) | R(2)
        elif mn.startswith('ds_write'):
            self.kind = 'ds'; self.rd = R(0) | R(1) | R(2); self.store = True
        elif mn.startswith('buffer_load') or mn.startswith('global_load'):
            self.kind = 'vmem'
            if 'lds' in mods:
                self.rd = R(0) | R(1) | R(2) | {('s','m0')}; self.ldsdma = True
            else:
                self.wr = R(0); self.rd = R(1) | R(2) | R(3)
        elif mn.startswith('buffer_store') or mn.startswith('global_store') or mn.startswith('buffer_atomic') or mn.startswith('global_atomic'):
            self.kind = 'vmem'; self.rd = R(0) | R(1) | R(2) | R(3); self.store = True
            self.wide = ('x3' in mn or 'x4' in mn); self.data = R(0)
        elif mn.startswith('buffer_') :
            self.kind = 'vmem'
        elif mn.startswith('s_'):
            self.kind = 'salu'
            if mn.startswith(('s_cmp','s_cbranch','s_branch','s_waitcnt','s_barrier','s_nop','s_endpgm','s_setprio','s_sleep','s_bitcmp')):
                for i in range(len(ops)): self.rd |= R(i)
            else:
                self.wr = R(0)
                for i in range(1, len(ops)): self.rd |= R(i)
                if 'saveexec' in mn: self.wr |= {('s','exec')}
        self.ws = 1
        if mn == 's_nop': self.ws = int(ops[0], 0) + 1

def check_hazards(text, verbose=True):
    ins = []
    for i, l in enumerate(text.split('\n')):
        s = l.strip()
        if not s or s.startswith(';') or s.startswith('.') or s.endswith(':'): continue
        s = s.split(';')[0].strip()
        if not s: continue
        ins.append(Ins(s, i+1))
    problems = []
    n = len(ins)
    W = 24
    for j in range(n):
        c = ins[j]
        dist = 0
        for k in range(j-1, max(-1, j-W-1), -1):
            p = ins[k]
            def need(req, why):
                if dist < req:
                    problems.append(f"line {c.idx}: '{c.line}' after line {p.idx} '{p.line}': {why} needs {req} has {dist}")
            if p.mn in ('s_branch','s_endpgm','s_setpc_b64'): break
            pv = {r for r in p.wr if r[0] in 'va'}
            ps = {r for r in p.wr if r[0] == 's'}
            if p.kind == 'valu':
                if c.kind == 'mfma' and pv & c.rd: need(2, 'VALU->MFMA operand')
                if p.mn in TRANS and c.kind == 'valu' and c.mn not in TRANS and pv & c.rd: need(1, 'trans->VALU')
                if p.mn in TRANS and c.kind == 'mfma' and pv & c.rd: need(2, 'trans->MFMA')
                if ps and c.kind == 'vmem' and ps & c.rd: need(5, 'VALU sgpr->VMEM')
                if ps and c.kind == 'valu' and (ps & c.rd):
                    if getattr(c,'readlane',False): need(4,'VALU sgpr->readlane sel') if (ps & regs_of(c.ops[2]) if len(c.ops)>2 else set()) else None
                    need(2, 'VALU sgpr/vcc->VALU const')
                if ps and c.kind == 'salu' and (ps & c.rd): need(1, 'VALU sgpr->SALU (conservative)')
                if getattr(c,'readlane',False) and pv & c.rd: need(1, 'VALU->readlane')
                if getattr(c,'permlane',False) and pv & c.rd: need(2, 'VALU->permlane')
                if getattr(c,'dpp',False) and pv & c.rd: need(2, 'VALU->DPP')
                if ('s','exec') in ps and c.kind in ('valu','mfma'): need(4, 'VALU exec write')
            if p.kind == 'mfma':
                req = {8:12, 4:8}[p.passes]
                if c.kind == 'mfma':
                    if p.wr & (c.a | c.b): need(req, 'MFMA D->MFMA A/B')
                    if p.wr & c.c:
                        if not (p.wr == c.c and p.passes == c.passes): need(req-2, 'MFMA D->MFMA C overlap')
                    if p.wr & c.wr and not (p.wr == c.c and p.passes==c.passes) and not (p.wr & c.c):
                        need(req-2, 'MFMA D->MFMA D WAW (conservative)')
                elif c.kind in ('valu','ds','vmem'):
                    if p.wr & (c.rd | c.wr): need(req, 'MFMA D->VALU/mem')
                    if c.kind == 'valu' and (p.c & c.wr): need({8:7,4:3}[p.passes], 'MFMA C WAR')
            if p.kind == 'vmem' and getattr(p,'wide',False) and getattr(p,'store',False):
                if c.kind == 'valu' and (p.data & c.wr): need(2, 'wide store data WAR')
            if p.kind == 'salu' and ('s','m0') in p.wr and getattr(c,'ldsdma',False): need(1, 'm0->lds dma')
            dist += p.ws
            if dist > 20: break
    if verbose:
        for q in problems[:50]: print('HAZARD', q)
    return problems
```

```python
import sys
from asmlib import *

NAME = "interleave_layers__ssm_conv_h3__glu_gated_geglu__prompt_kernel"

CNT   = 0x000000
XR    = 0x010000
YP    = 0x210000
W1F   = 0x410000
WDF   = 0x790000
CSP   = 0x950000
STAT0 = 0x990000
STATX0= 0x9D0000
STAT2 = 0xA10000
STATX1= 0xA50000
XF0   = 0xA90000
XF1   = 0xC90000
HF0   = 0xE90000
HF1   = 0x1590000
WS_SIZE = 0x2000000
C_A, C_B, C_X0, C_H0, C_X1, C_H1 = 0, 8, 16, 32, 48, 64

Q, K, V, SH, HK, WG, WU, WD, OUT, WS, DBG = 4, 8, 12, 16, 20, 24, 28, 32, 36, 40, 44
def srd(r): return f"s[{r}:{r+3}]"
sX, sJ, sW, sDP = 48, 49, 50, 51
sT0, sT1, sT2, sT3, sT4, sT5 = 52, 53, 54, 55, 56, 57
sD0, sD1 = 58, 59
sSPIN = 60
sRB64, sDT, sDT32, sST32 = 61, 62, 63, 64
sRB128, sFS = 65, 66
sLAYER, sXF, sHF, sSTS, sSTX, sCX, sCH = 67, 68, 69, 70, 71, 72, 73
sU0, sU1, sU2, sU3 = 74, 75, 76, 77
SPIN_LIMIT = 20000

HC_STRIDE = 4416
HC = 0
HC_CH = 8*HC_STRIDE
XI = 2*HC_CH
XI_CH = 63*144
TT = 88832
WST = 98304
EX = 122880
LDS_SIZE = 163840
RING = 0
RED = 98304
CST = 147456

class Gen:
    def __init__(self, stop_after=None):
        self.a = Asm()
        self.stop_after = stop_after
        self.uid = 0
    def lbl(self, p):
        self.uid += 1
        return f"L_{p}_{self.uid}"

    def arrive(self, cnt_sgpr_or_imm, check_init=False):
        a = self.a
        a("s_waitcnt vmcnt(0) lgkmcnt(0)")
        a("s_barrier")
        skip = self.lbl("arr")
        a(f"s_cmp_lg_u32 s{sW}, 0")
        a(f"s_cbranch_scc1 {skip}")
        a("s_mov_b64 exec, 1")
        if check_init:
            lp = self.lbl("ini"); ok = self.lbl("iniok")
            a(f"s_mov_b32 s{sSPIN}, 0")
            a("v_mov_b32 v2, 0")
            a.label(lp)
            a(f"buffer_load_dword v3, v2, {srd(DBG)}, 0 offen sc1")
            a("s_waitcnt vmcnt(0)")
            a(f"v_readfirstlane_b32 s{sT0}, v3")
            a(f"s_add_u32 s{sSPIN}, s{sSPIN}, 1")
            a(f"s_cmp_eq_u32 s{sT0}, 1")
            a(f"s_cbranch_scc1 {ok}")
            a(f"s_cmp_lt_u32 s{sSPIN}, {SPIN_LIMIT}")
            a(f"s_cbranch_scc1 {lp}")
            a.label(ok)
        if isinstance(cnt_sgpr_or_imm, int):
            a(f"v_mov_b32 v2, {cnt_sgpr_or_imm*256}")
        else:
            a(f"s_lshl_b32 s{sT0}, {cnt_sgpr_or_imm}, 8")
            a(f"v_mov_b32 v2, s{sT0}")
        a("v_mov_b32 v3, 1")
        a(f"buffer_atomic_add v3, v2, {srd(WS)}, 0 offen sc1")
        a("s_mov_b64 exec, -1")
        a.label(skip)

    def wait_counter(self, cnt_sgpr, target, nlanes=1, base_idx=None):
        a = self.a
        skip = self.lbl("wt"); lp = self.lbl("poll"); ok = self.lbl("pollok")
        a(f"s_cmp_lg_u32 s{sW}, 0")
        a(f"s_cbranch_scc1 {skip}")
        if nlanes == 1:
            a("s_mov_b64 exec, 1")
            a(f"s_lshl_b32 s{sT0}, {cnt_sgpr}, 8")
            a(f"v_mov_b32 v2, s{sT0}")
        else:
            a(f"s_mov_b64 exec, {(1<<nlanes)-1}")
            a(f"v_add_u32 v2, {base_idx}, v1")
            a("v_lshlrev_b32 v2, 8, v2")
        a(f"s_mov_b32 s{sSPIN}, 0")
        a.label(lp)
        a(f"buffer_load_dword v3, v2, {srd(WS)}, 0 offen sc1")
        a("s_waitcnt vmcnt(0)")
        a(f"v_cmp_le_u32 vcc, {target}, v3")
        a(f"s_add_u32 s{sSPIN}, s{sSPIN}, 1")
        a("s_nop 0")
        a(f"s_cmp_eq_u64 vcc, {(1<<nlanes)-1}")
        a(f"s_cbranch_scc1 {ok}")
        a(f"s_cmp_lt_u32 s{sSPIN}, {SPIN_LIMIT}")
        a(f"s_cbranch_scc1 {lp}")
        a.label(ok)
        a("s_mov_b64 exec, -1")
        a.label(skip)
        a("s_barrier")

    def prologue(self):
        a = self.a
        a("s_cmp_ge_u32 s2, 256")
        a("s_cbranch_scc1 L_end")
        for off, reg in [(0,Q),(8,K),(16,V),(24,SH),(32,HK),(56,WG),(64,WU),(72,WD),(80,OUT),(96,WS),(88,DBG)]:
            a(f"s_load_dwordx2 s[{reg}:{reg+1}], s[0:1], {off}")
        a(f"s_load_dwordx2 s[{sT0}:{sT1}], s[0:1], 40")
        a("v_and_b32 v1, 63, v0")
        a("v_lshrrev_b32 v2, 6, v0")
        a(f"s_and_b32 s{sX}, s2, 7")
        a(f"s_lshr_b32 s{sJ}, s2, 3")
        a(f"v_readfirstlane_b32 s{sW}, v2")
        a(f"s_lshl_b32 s{sDP}, s{sX}, 5")
        a(f"s_add_u32 s{sDP}, s{sDP}, s{sJ}")
        a(f"s_lshr_b32 s{sT2}, s{sJ}, 3")
        a(f"s_lshl_b32 s{sRB64}, s{sX}, 2")
        a(f"s_add_u32 s{sRB64}, s{sRB64}, s{sT2}")
        a(f"s_and_b32 s{sDT}, s{sJ}, 7")
        a(f"s_lshr_b32 s{sT2}, s{sX}, 2")
        a(f"s_lshl_b32 s{sT2}, s{sT2}, 3")
        a(f"s_lshr_b32 s{sT3}, s{sJ}, 2")
        a(f"s_add_u32 s{sRB128}, s{sT2}, s{sT3}")
        a(f"s_and_b32 s{sT2}, s{sX}, 3")
        a(f"s_lshl_b32 s{sT2}, s{sT2}, 2")
        a(f"s_and_b32 s{sT3}, s{sJ}, 3")
        a(f"s_add_u32 s{sFS}, s{sT2}, s{sT3}")
        sizes = {Q:2097152,K:2097152,V:2097152,SH:4096,HK:2097152,WG:1835008,WU:1835008,WD:1835008,OUT:2097152,WS:WS_SIZE,DBG:256}
        for r, sz in sizes.items():
            a(f"s_mov_b32 s{r+2}, {sz}")
            a(f"s_mov_b32 s{r+3}, 0x20000")
        a("s_waitcnt lgkmcnt(0)")
        a(f"s_lshr_b32 s{sT2}, s{sW}, 1")
        a(f"s_lshl_b32 s{sDT32}, s{sDT}, 1")
        a(f"s_add_u32 s{sDT32}, s{sDT32}, s{sT2}")
        a(f"s_and_b32 s{sT2}, s{sW}, 1")
        a(f"s_lshl_b32 s{sST32}, s{sRB64}, 1")
        a(f"s_add_u32 s{sST32}, s{sST32}, s{sT2}")
        a(f"s_lshl_b32 s{sT2}, s{sDP}, 2")
        a(f"s_load_dword s{sD1}, s[{sT0}:{sT1}], s{sT2}")

    def p0(self):
        a = self.a
        vRG, vCQ, vR, vKa = 4, 5, 6, 7
        vK = 16
        vV = 30
        vSW = 40
        vHC = 48
        vQ = 64
        a("v_lshrrev_b32 v4, 4, v0")
        a("v_and_b32 v5, 15, v0")
        a(f"s_lshl_b32 s{sT2}, s{sJ}, 16")
        a(f"s_lshl_b32 s{sT3}, s{sX}, 7")
        a(f"s_add_u32 s{sT2}, s{sT2}, s{sT3}")
        a("v_lshlrev_b32 v6, 12, v4")
        a("v_lshlrev_b32 v2, 3, v5")
        a("v_add_u32 v6, v6, v2")
        a(f"v_add_u32 v6, s{sT2}, v6")
        for i in range(3):
            a(f"v_subrev_u32 v{vKa+i}, {1024*(3-i)}, v6")
        for i in range(3):
            a(f"buffer_load_dwordx2 v[{vK+2*i}:{vK+2*i+1}], v{vKa+i}, {srd(K)}, 0 offen")
        for i in range(4):
            a(f"buffer_load_dwordx2 v[{vK+6+2*i}:{vK+6+2*i+1}], v6, {srd(K)}, 0 offen offset:{1024*i}")
        for i in range(4):
            a(f"buffer_load_dwordx2 v[{vV+2*i}:{vV+2*i+1}], v6, {srd(V)}, 0 offen offset:{1024*i}")
        a("v_lshlrev_b32 v2, 5, v5")
        a(f"s_lshl_b32 s{sT3}, s{sX}, 9")
        a(f"v_add_u32 v2, s{sT3}, v2")
        a(f"buffer_load_dwordx4 v[{vSW}:{vSW+3}], v2, {srd(SH)}, 0 offen")
        a(f"buffer_load_dwordx4 v[{vSW+4}:{vSW+7}], v2, {srd(SH)}, 0 offen offset:16")
        n_after = 0
        zskip = self.lbl("z")
        a(f"s_or_b32 s{sT3}, s2, s{sW}")
        a(f"s_cmp_lg_u32 s{sT3}, 0")
        a(f"s_cbranch_scc1 {zskip}")
        a("v_lshlrev_b32 v2, 8, v1")
        a("v_mov_b32 v3, 0")
        a(f"s_mov_b32 s{sT3}, 16384")
        a(f"buffer_store_dword v3, v2, {srd(WS)}, 0 offen sc1")
        a(f"buffer_store_dword v3, v2, {srd(WS)}, s{sT3} offen sc1")
        a.label(zskip)
        a("v_lshlrev_b32 v2, 4, v0")
        a(f"s_lshl_b32 s{sT3}, s{sDP}, 13")
        a(f"v_add_u32 v3, s{sT3}, v2")
        a("v_subrev_u32 v8, 16, v3")
        a("v_add_u32 v9, 0x1000, v8")
        a("v_cmp_eq_u32 vcc, 0, v0")
        a("v_mov_b32 v10, 0x80000000")
        a("s_nop 0")
        a("v_cndmask_b32 v8, v8, v10, vcc")
        a("v_cndmask_b32 v9, v9, v10, vcc")
        a(f"buffer_load_dwordx4 v[{vHC}:{vHC+3}], v8, {srd(HK)}, 0 offen")
        a(f"buffer_load_dwordx4 v[{vHC+4}:{vHC+7}], v3, {srd(HK)}, 0 offen")
        a(f"buffer_load_dwordx4 v[{vHC+8}:{vHC+11}], v9, {srd(HK)}, 0 offen")
        a(f"s_mov_b32 s{sT3}, 0x1000")
        a(f"buffer_load_dwordx4 v[{vHC+12}:{vHC+15}], v3, {srd(HK)}, s{sT3} offen")
        n_after += 4
        a("v_and_b32 v2, 31, v1")
        a("v_lshlrev_b32 v2, 10, v2")
        a("v_lshrrev_b32 v3, 5, v1")
        a("v_lshlrev_b32 v3, 4, v3")
        a("v_add_u32 v2, v2, v3")
        a(f"s_lshl_b32 s{sT3}, s{sST32}, 15")
        a(f"s_lshl_b32 s{sT4}, s{sDT32}, 6")
        a(f"s_add_u32 s{sT3}, s{sT3}, s{sT4}")
        a(f"buffer_load_dwordx4 v[{vQ}:{vQ+3}], v2, {srd(Q)}, s{sT3} offen")
        a(f"buffer_load_dwordx4 v[{vQ+4}:{vQ+7}], v2, {srd(Q)}, s{sT3} offen offset:32")
        n_after += 2
        wskip = self.lbl("wdma")
        a("s_cmp_ge_u32 s2, 224")
        a(f"s_cbranch_scc1 {wskip}")
        a("v_lshrrev_b32 v2, 3, v1")
        a("v_mul_u32_u24 v2, 3584, v2")
        a("v_and_b32 v3, 7, v1")
        a("v_lshlrev_b32 v3, 4, v3")
        a("v_add_u32 v2, v2, v3")
        a(f"s_mul_i32 s{sT3}, s{sX}, {64*3584}")
        a(f"s_lshl_b32 s{sT4}, s{sJ}, 7")
        a(f"s_add_u32 s{sT3}, s{sT3}, s{sT4}")
        a(f"s_mul_i32 s{sT4}, s{sW}, {16*3584}")
        a(f"s_add_u32 s{sT3}, s{sT3}, s{sT4}")
        a(f"s_lshl_b32 s{sT4}, s{sW}, 11")
        for mat, ldsb in ((WG, WST), (WU, WST+8192)):
            for u in range(2):
                a(f"s_add_u32 m0, s{sT4}, {ldsb + u*1024}")
                a(f"s_add_u32 s{sT5}, s{sT3}, {u*8*3584}")
                a(f"buffer_load_dwordx4 v2, {srd(mat)}, s{sT5} offen lds")
        a("v_lshrrev_b32 v2, 3, v1")
        a("v_lshlrev_b32 v2, 10, v2")
        a("v_add_u32 v2, v2, v3")
        a(f"s_lshl_b32 s{sT3}, s{sJ}, 16")
        a(f"s_lshl_b32 s{sT5}, s{sX}, 7")
        a(f"s_add_u32 s{sT3}, s{sT3}, s{sT5}")
        a(f"s_lshl_b32 s{sT5}, s{sW}, 14")
        a(f"s_add_u32 s{sT3}, s{sT3}, s{sT5}")
        for u in range(2):
            a(f"s_add_u32 m0, s{sT4}, {WST+16384 + u*1024}")
            a(f"s_add_u32 s{sT5}, s{sT3}, {u*8*1024}")
            a(f"buffer_load_dwordx4 v2, {srd(WD)}, s{sT5} offen lds")
        a.label(wskip)

        w1 = self.lbl("w"); w2 = self.lbl("w")
        a("s_cmp_ge_u32 s2, 224")
        a(f"s_cbranch_scc1 {w1}")
        a("s_waitcnt vmcnt(12)")
        a(f"s_branch {w2}")
        a.label(w1)
        a("s_waitcnt vmcnt(6)")
        a.label(w2)
        z2 = self.lbl("z")
        a(f"s_or_b32 s{sT3}, s2, s{sW}")
        a(f"s_cmp_lg_u32 s{sT3}, 0")
        a(f"s_cbranch_scc1 {z2}")
        a("s_mov_b64 exec, 1")
        a("v_mov_b32 v2, 0")
        a("v_mov_b32 v3, 1")
        a(f"buffer_store_dword v3, v2, {srd(DBG)}, 0 offen sc1")
        a("s_mov_b64 exec, -1")
        a.label(z2)
        KF, WF, VF, KS = 80, 108, 124, 140
        def unpack(dst_lo, dst_hi, src):
            a(f"v_lshlrev_b32 v{dst_lo}, 16, v{src}")
            a(f"v_and_b32 v{dst_hi}, 0xffff0000, v{src}")
        for i in range(7):
            unpack(KF+i*4+0, KF+i*4+1, vK+2*i)
            unpack(KF+i*4+2, KF+i*4+3, vK+2*i+1)
        for c in range(4):
            unpack(WF+c*4+0, WF+c*4+1, vSW+2*c)
            unpack(WF+c*4+2, WF+c*4+3, vSW+2*c+1)
        for r in range(4):
            unpack(VF+r*4+0, VF+r*4+1, vV+2*r)
            unpack(VF+r*4+2, VF+r*4+3, vV+2*r+1)
        for jj in (3,2,1,0):
            for r in range(4):
                for c in range(4):
                    d = KS + r*4 + c
                    if jj == 3: a(f"v_mul_f32 v{d}, v{KF+(r+3-jj)*4+c}, v{WF+c*4+jj}")
                    else: a(f"v_fmac_f32 v{d}, v{KF+(r+3-jj)*4+c}, v{WF+c*4+jj}")
        for r in range(4):
            for c in range(4):
                a(f"v_mul_f32 v{KS+r*4+c}, v{KS+r*4+c}, v{VF+r*4+c}")
        PK = 160
        for c in range(4):
            a(f"v_cvt_pk_bf16_f32 v{PK+2*c}, v{KS+3*4+c}, v{KS+2*4+c}")
            a(f"v_cvt_pk_bf16_f32 v{PK+2*c+1}, v{KS+1*4+c}, v{KS+0*4+c}")
        a("v_mul_u32_u24 v2, 576, v5")
        a("v_lshlrev_b32 v3, 3, v4")
        a("v_sub_u32 v2, v2, v3")
        a(f"v_add_u32 v2, {TT+120}, v2")
        for c in range(4):
            a(f"ds_write_b64 v2, v[{PK+2*c}:{PK+2*c+1}] offset:{144*c}")
        a("s_waitcnt lgkmcnt(0)")
        a("s_barrier")
        a("v_lshrrev_b32 v2, 3, v0")
        a("v_and_b32 v3, 7, v0")
        a("v_lshlrev_b32 v3, 4, v3")
        a("v_mul_u32_u24 v8, 144, v2")
        a("v_add_u32 v8, v8, v3")
        a(f"v_add_u32 v8, {TT}, v8")
        a(f"ds_read_b128 v[{PK}:{PK+3}], v8")
        a(f"ds_read_b128 v[{PK+4}:{PK+7}], v8 offset:{32*144}")
        a("v_lshlrev_b32 v2, 12, v2")
        a("v_add_u32 v2, v2, v3")
        a(f"s_lshl_b32 s{sT3}, s{sX}, 18")
        a(f"s_sub_u32 s{sT4}, 31, s{sJ}")
        a(f"s_lshl_b32 s{sT4}, s{sT4}, 7")
        a(f"s_add_u32 s{sT3}, s{sT3}, s{sT4}")
        a(f"s_add_u32 s{sT3}, s{sT3}, {XR}")
        a(f"s_add_u32 s{sT4}, s{sT3}, {32*4096}")
        a("s_waitcnt lgkmcnt(0)")
        a(f"buffer_store_dwordx4 v[{PK}:{PK+3}], v2, {srd(WS)}, s{sT3} offen sc1")
        a(f"buffer_store_dwordx4 v[{PK+4}:{PK+7}], v2, {srd(WS)}, s{sT4} offen sc1")
        self.arrive(f"s{sX}", check_init=True)

        a("v_mov_b32 v10, 0x3f803f80")
        a("v_mov_b32 v8, 0")
        a("v_mov_b32 v9, 0")
        for i in range(8):
            a(f"v_dot2_f32_bf16 v8, v{vQ+i}, v10, v8")
            a(f"v_dot2_f32_bf16 v9, v{vQ+i}, v{vQ+i}, v9")
        self.stat_store(8, 9, STAT0, zero_too=STAT2, tag=True)

        a("v_lshlrev_b32 v2, 4, v0")
        a(f"v_add_u32 v2, {HC+128}, v2")
        TW = 80
        HH = 88
        HO = 96
        for ch in range(2):
            Wb = vHC + 8*ch
            for k in range(1, 7):
                a(f"v_mov_b32 v{TW+k-1}, v{Wb+k}")
            for k in range(7):
                a(f"v_alignbyte_b32 v{HH+k}, v{Wb+k+1}, v{Wb+k}, 2")
            for k in range(1, 7):
                a(f"v_alignbyte_b32 v{HO+k-1}, v{Wb+k+1}, v{Wb+k}, 2")
            base = ch*HC_CH
            src = {0: Wb+4, 2: TW+2, 4: Wb+2, 6: TW+0, 1: HO+2, 3: HH+2, 5: HO+0, 7: HH+0}
            for c in range(8):
                off = base + c*HC_STRIDE
                if off + 0 > 65535 - 0:
                    a(f"v_add_u32 v3, {off}, v2")
                    a(f"ds_write_b128 v3, v[{src[c]}:{src[c]+3}]")
                else:
                    a(f"ds_write_b128 v2, v[{src[c]}:{src[c]+3}] offset:{off}")
        a("v_mov_b32 v80, 0"); a("v_mov_b32 v81, 0"); a("v_mov_b32 v82, 0"); a("v_mov_b32 v83, 0")
        a("v_lshrrev_b32 v2, 3, v1")
        a(f"v_mul_u32_u24 v2, {HC_STRIDE}, v2")
        a("v_and_b32 v3, 7, v1")
        a("v_lshlrev_b32 v3, 4, v3")
        a("v_add_u32 v2, v2, v3")
        a(f"s_and_b32 s{sT3}, s{sW}, 1")
        a(f"s_mul_i32 s{sT3}, s{sT3}, {HC_CH}")
        a(f"v_add_u32 v2, s{sT3}, v2")
        a("ds_write_b128 v2, v[80:83]")
        a(f"s_lshr_b32 s{sT3}, s{sW}, 1")
        a(f"s_mul_i32 s{sT3}, s{sT3}, {XI_CH}")
        a(f"s_and_b32 s{sT4}, s{sW}, 1")
        a(f"s_lshl_b32 s{sT4}, s{sT4}, 10")
        a(f"s_add_u32 s{sT3}, s{sT3}, s{sT4}")
        a(f"s_add_u32 s{sT3}, s{sT3}, {XI+32*144}")
        a("v_lshlrev_b32 v2, 4, v1")
        a(f"v_add_u32 v2, s{sT3}, v2")
        a(f"ds_write_b128 v2, v[80:83]")
        a(f"ds_write_b128 v2, v[80:83] offset:2048")
        a("v_cmp_gt_u32 vcc, 23, v1")
        a(f"s_and_b32 s{sT4}, s{sW}, 1")
        a(f"s_cmp_eq_u32 s{sT4}, 0")
        a("s_cselect_b64 s[52:53], -1, 0")
        a("s_and_b64 vcc, vcc, s[52:53]")
        a("s_and_saveexec_b64 s[54:55], vcc")
        l3 = self.lbl("z3")
        a(f"s_cbranch_execz {l3}")
        a(f"ds_write_b128 v2, v[80:83] offset:4096")
        a.label(l3)
        a("s_mov_b64 exec, -1")

        rskip = self.lbl("rp")
        a("s_cmp_ge_u32 s2, 224")
        a(f"s_cbranch_scc1 {rskip}")
        a("v_lshrrev_b32 v2, 4, v1")
        a("v_and_b32 v3, 1, v2")
        a("v_lshrrev_b32 v2, 1, v2")
        a("v_lshlrev_b32 v4, 10, v2")
        a("v_bfe_u32 v5, v1, 2, 2")
        a("v_lshlrev_b32 v5, 7, v5")
        a("v_add_u32 v4, v4, v5")
        a("v_and_b32 v5, 1, v1")
        a("v_lshlrev_b32 v5, 4, v5")
        a("v_add_u32 v4, v4, v5")
        a("v_bfe_u32 v5, v1, 1, 1")
        a("v_lshlrev_b32 v5, 3, v5")
        a("v_add_u32 v4, v4, v5")
        a("v_lshlrev_b32 v5, 13, v3")
        a("v_add_u32 v5, v4, v5")
        a(f"s_lshl_b32 s{sT3}, s{sW}, 5")
        a(f"s_add_u32 s{sT3}, s{sT3}, {WST}")
        a(f"v_add_u32 v5, s{sT3}, v5")
        R = 80
        for jj in range(4):
            a(f"ds_read_b64_tr_b16 v[{R+4*jj}:{R+4*jj+1}], v5 offset:{jj*2048}")
            a(f"ds_read_b64_tr_b16 v[{R+4*jj+2}:{R+4*jj+3}], v5 offset:{jj*2048+512}")
        a("v_lshlrev_b32 v6, 5, v3")
        a("v_add_u32 v6, v4, v6")
        a(f"s_and_b32 s{sT3}, s{sW}, 1")
        a(f"s_lshl_b32 s{sT3}, s{sT3}, 6")
        a(f"s_lshr_b32 s{sT4}, s{sW}, 1")
        a(f"s_lshl_b32 s{sT4}, s{sT4}, 12")
        a(f"s_add_u32 s{sT3}, s{sT3}, s{sT4}")
        a(f"s_add_u32 s{sT3}, s{sT3}, {WST+16384}")
        a(f"v_add_u32 v6, s{sT3}, v6")
        R2 = 96
        for jj in range(2):
            a(f"ds_read_b64_tr_b16 v[{R2+4*jj}:{R2+4*jj+1}], v6 offset:{jj*2048}")
            a(f"ds_read_b64_tr_b16 v[{R2+4*jj+2}:{R2+4*jj+3}], v6 offset:{jj*2048+512}")
        a("v_lshlrev_b32 v7, 4, v1")
        a(f"s_lshl_b32 s{sT3}, s{sJ}, 2")
        a(f"s_add_u32 s{sT3}, s{sT3}, s{sW}")
        a(f"s_lshl_b32 s{sT4}, s{sT3}, 15")
        a(f"s_lshl_b32 s{sT5}, s{sX}, 12")
        a(f"s_add_u32 s{sT4}, s{sT4}, s{sT5}")
        a(f"s_add_u32 s{sT4}, s{sT4}, {W1F}")
        a("s_waitcnt lgkmcnt(4)")
        for jj in range(4):
            a(f"buffer_store_dwordx4 v[{R+4*jj}:{R+4*jj+3}], v7, {srd(WS)}, s{sT4} offen offset:{jj*1024} sc1")
        a("v_mov_b32 v8, 0")
        for k in range(16):
            a(f"v_dot2_f32_bf16 v8, v{R+k}, v10, v8")
        a(f"s_mul_i32 s{sT5}, s{sX}, {112*256}")
        a(f"s_lshl_b32 s{sT3}, s{sT3}, 8")
        a(f"s_add_u32 s{sT5}, s{sT5}, s{sT3}")
        a(f"s_add_u32 s{sT5}, s{sT5}, {CSP}")
        a("v_lshlrev_b32 v9, 2, v1")
        a(f"buffer_store_dword v8, v9, {srd(WS)}, s{sT5} offen sc1")
        a(f"s_lshl_b32 s{sT3}, s{sX}, 1")
        a(f"s_and_b32 s{sT4}, s{sW}, 1")
        a(f"s_add_u32 s{sT3}, s{sT3}, s{sT4}")
        a(f"s_mul_i32 s{sT3}, s{sT3}, {112*1024}")
        a(f"s_lshl_b32 s{sT4}, s{sJ}, 12")
        a(f"s_add_u32 s{sT3}, s{sT3}, s{sT4}")
        a(f"s_lshr_b32 s{sT4}, s{sW}, 1")
        a(f"s_lshl_b32 s{sT4}, s{sT4}, 11")
        a(f"s_add_u32 s{sT3}, s{sT3}, s{sT4}")
        a(f"s_add_u32 s{sT3}, s{sT3}, {WDF}")
        a("s_waitcnt lgkmcnt(0)")
        for jj in range(2):
            a(f"buffer_store_dwordx4 v[{R2+4*jj}:{R2+4*jj+3}], v7, {srd(WS)}, s{sT3} offen offset:{jj*1024} sc1")
        a.label(rskip)

    def stat_store(self, vs, vq, base, zero_too=None, tag=False):
        a = self.a
        a(f"v_mov_b32 v11, v{vs}")
        a(f"v_mov_b32 v12, v{vq}")
        a("s_nop 1")
        a(f"v_permlane32_swap_b32 v{vs}, v11")
        a(f"v_permlane32_swap_b32 v{vq}, v12")
        a("s_nop 0")
        a(f"v_add_f32 v{vs}, v{vs}, v11")
        a(f"v_add_f32 v{vq}, v{vq}, v12")
        if tag:
            a(f"v_or_b32 v{vq}, 1, v{vq}")
        assert vq == vs + 1
        a("v_lshlrev_b32 v2, 3, v1")
        a(f"s_lshl_b32 s{sT3}, s{sDT32}, 14")
        a(f"s_lshl_b32 s{sT4}, s{sST32}, 8")
        a(f"s_add_u32 s{sT3}, s{sT3}, s{sT4}")
        a("s_mov_b64 exec, 0xffffffff")
        a(f"s_add_u32 s{sT4}, s{sT3}, {base}")
        a(f"buffer_store_dwordx2 v[{vs}:{vq}], v2, {srd(WS)}, s{sT4} offen sc1")
        if zero_too is not None:
            a("v_mov_b32 v12, 0"); a("v_mov_b32 v13, 0")
            a(f"s_add_u32 s{sT4}, s{sT3}, {zero_too}")
            a(f"buffer_store_dwordx2 v[12:13], v2, {srd(WS)}, s{sT4} offen sc1")
        a("s_mov_b64 exec, -1")

    def conv(self):
        a = self.a
        self.wait_counter(f"s{sX}", 32)
        a("v_lshlrev_b32 v2, 4, v0")
        a(f"s_lshl_b32 s{sT3}, s{sDP}, 13")
        a(f"s_add_u32 s{sT3}, s{sT3}, {XR}")
        a(f"s_add_u32 s{sT4}, s{sT3}, 4096")
        a(f"buffer_load_dwordx4 v[80:83], v2, {srd(WS)}, s{sT3} offen sc1")
        a(f"buffer_load_dwordx4 v[84:87], v2, {srd(WS)}, s{sT4} offen sc1")
        a("v_lshrrev_b32 v3, 3, v0")
        a("v_mul_u32_u24 v3, 144, v3")
        a("v_and_b32 v4, 7, v0")
        a("v_lshlrev_b32 v4, 4, v4")
        a("v_add_u32 v3, v3, v4")
        a(f"v_add_u32 v3, {XI}, v3")
        a("s_waitcnt vmcnt(1)")
        a("ds_write_b128 v3, v[80:83]")
        a("s_waitcnt vmcnt(0)")
        a(f"ds_write_b128 v3, v[84:87] offset:{XI_CH}")
        vA, vB = 8, 9
        ACC0, ACC1, AS, BS = 16, 32, 80, 112
        a("v_and_b32 v2, 31, v1")
        a("v_lshrrev_b32 v3, 5, v1")
        a(f"s_lshr_b32 s{sT3}, s{sW}, 1")
        a(f"s_and_b32 s{sT4}, s{sW}, 1")
        a("v_sub_u32 v4, 31, v2")
        a("v_mul_u32_u24 v4, 144, v4")
        a("v_lshlrev_b32 v5, 4, v3")
        a("v_add_u32 v4, v4, v5")
        a(f"s_mul_i32 s{sT5}, s{sT3}, {XI_CH}")
        a(f"s_mul_i32 s{sT2}, s{sT4}, {16*144}")
        a(f"s_add_u32 s{sT5}, s{sT5}, s{sT2}")
        a(f"s_add_u32 s{sT5}, s{sT5}, {XI}")
        a(f"v_add_u32 v{vA}, s{sT5}, v4")
        a("v_and_b32 v4, 7, v2")
        a(f"v_mul_u32_u24 v4, {HC_STRIDE}, v4")
        a("v_add_u32 v4, v4, v5")
        a("v_lshrrev_b32 v6, 3, v2")
        a("v_lshlrev_b32 v6, 4, v6")
        a("v_sub_u32 v4, v4, v6")
        a(f"s_mul_i32 s{sT5}, s{sT3}, {HC_CH}")
        a(f"s_lshl_b32 s{sT2}, s{sT4}, 11")
        a(f"s_add_u32 s{sT5}, s{sT5}, s{sT2}")
        a(f"s_add_u32 s{sT5}, s{sT5}, {HC+128-64}")
        a(f"v_add_u32 v{vB}, s{sT5}, v4")
        for i in range(32): a(f"v_mov_b32 v{ACC0+i}, 0")
        a("s_waitcnt lgkmcnt(0)")
        a("s_barrier")
        def Aoff(u): return (u >> 2)*144 + (u & 3)*32
        def Boff(u): return (u+2)*32
        a(f"ds_read_b128 v[{BS+24}:{BS+27}], v{vB} offset:0")
        a(f"ds_read_b128 v[{BS+28}:{BS+31}], v{vB} offset:32")
        for u in range(4):
            a(f"ds_read_b128 v[{AS+4*u}:{AS+4*u+3}], v{vA} offset:{Aoff(u)}")
            a(f"ds_read_b128 v[{BS+4*u}:{BS+4*u+3}], v{vB} offset:{Boff(u)}")
        a(f"s_mov_b32 s{sT2}, 8")
        lp = self.lbl("conv")
        a(".p2align 6")
        a.label(lp)
        for u in range(8):
            a("s_waitcnt lgkmcnt(6)")
            un = (u+4) & 7
            a(f"v_mfma_f32_32x32x16_bf16 v[{ACC0}:{ACC0+15}], v[{AS+4*u}:{AS+4*u+3}], v[{BS+4*u}:{BS+4*u+3}], v[{ACC0}:{ACC0+15}]")
            a(f"ds_read_b128 v[{AS+4*un}:{AS+4*un+3}], v{vA} offset:{Aoff(u+4)}")
            um = (u-2) & 7
            a(f"v_mfma_f32_32x32x16_bf16 v[{ACC1}:{ACC1+15}], v[{AS+4*u}:{AS+4*u+3}], v[{BS+4*um}:{BS+4*um+3}], v[{ACC1}:{ACC1+15}]")
            a(f"ds_read_b128 v[{BS+4*un}:{BS+4*un+3}], v{vB} offset:{Boff(u+4)}")
        a(f"v_add_u32 v{vA}, 288, v{vA}")
        a(f"v_add_u32 v{vB}, 256, v{vB}")
        a(f"s_sub_u32 s{sT2}, s{sT2}, 1")
        a(f"s_cmp_lg_u32 s{sT2}, 0")
        a(f"s_cbranch_scc1 {lp}")
        a("v_and_b32 v2, 31, v1")
        a("v_sub_u32 v2, 63, v2")
        a("v_lshlrev_b32 v2, 2, v2")
        a("v_lshrrev_b32 v3, 5, v1")
        a("v_lshlrev_b32 v3, 10, v3")
        a("v_add_u32 v2, v2, v3")
        a(f"s_lshl_b32 s{sT3}, s{sW}, 13")
        a(f"s_add_u32 s{sT3}, s{sT3}, {EX-128}")
        a(f"v_add_u32 v2, s{sT3}, v2")
        a("s_waitcnt lgkmcnt(0)")
        a("s_nop 7")
        for nt, acc in ((0, ACC0), (1, ACC1)):
            for i in range(16):
                off = (8*(i>>2) + (i&3))*256 + (1-nt)*128
                a(f"ds_write_b32 v2, v{acc+i} offset:{off}")
        a("s_waitcnt lgkmcnt(0)")
        a("s_barrier")
        a(f"s_lshl_b32 s{sD0}, s{sD1}, 16")
        a(f"s_and_b32 s{sD1}, s{sD1}, 0xffff0000")
        a("v_lshlrev_b32 v2, 4, v0")
        a(f"v_add_u32 v3, {EX}, v2")
        E = 16
        for u in range(2):
            for w in range(4):
                a(f"ds_read_b128 v[{E+u*16+4*w}:{E+u*16+4*w+3}], v3 offset:{w*8192 + u*4096}")
        KV = 48
        for u in range(2):
            a(f"v_lshlrev_b32 v4, 2, v0")
            a(f"v_sub_u32 v4, {2044 - 1024*u}, v4")
            a("v_lshrrev_b32 v5, 6, v4")
            a("v_mul_u32_u24 v5, 144, v5")
            a("v_and_b32 v4, 63, v4")
            a("v_lshlrev_b32 v4, 1, v4")
            a("v_add_u32 v4, v4, v5")
            a(f"v_add_u32 v4, {XI}, v4")
            a(f"ds_read_b64 v[{KV+4*u}:{KV+4*u+1}], v4")
            a(f"ds_read_b64 v[{KV+4*u+2}:{KV+4*u+3}], v4 offset:{XI_CH}")
        a("s_waitcnt lgkmcnt(0)")
        T = 56
        for u in range(2):
            for c in range(2):
                sD = sD0 if c == 0 else sD1
                for e in range(4):
                    ri = 3 - e
                    src = KV + 4*u + 2*c + (ri >> 1)
                    t = T + c*4 + e
                    if ri & 1: a(f"v_and_b32 v{t}, 0xffff0000, v{src}")
                    else: a(f"v_lshlrev_b32 v{t}, 16, v{src}")
                    y = E + u*16 + 8*c + e
                    y2 = E + u*16 + 8*c + 4 + e
                    a(f"v_add_f32 v{y}, v{y}, v{y2}")
                    a(f"v_fma_f32 v{y}, s{sD}, v{t}, v{y}")
            for e in range(4):
                a(f"v_cvt_pk_bf16_f32 v{64+8+u*4+e}, v{E+u*16+e}, v{E+u*16+8+e}")
        a(f"s_lshl_b32 s{sT3}, s{sDP}, 13")
        a(f"s_add_u32 s{sT3}, s{sT3}, {YP}")
        a(f"buffer_store_dwordx4 v[72:75], v2, {srd(WS)}, s{sT3} offen sc1")
        a(f"s_add_u32 s{sT3}, s{sT3}, 4096")
        a(f"buffer_store_dwordx4 v[76:79], v2, {srd(WS)}, s{sT3} offen sc1")
        a(f"s_add_u32 s{sT5}, s{sX}, {C_B}")
        self.arrive(f"s{sT5}")
        self.wait_counter(None, 32, nlanes=8, base_idx=C_B)

    def vm_reset(self): self.vm = []
    def vm(self): pass
    def vm_issue(self, tag): self.vmq.append(tag)
    def vm_wait(self, tag):
        idx = max(i for i, t in enumerate(self.vmq) if t == tag)
        n = len(self.vmq) - 1 - idx
        assert n <= 63, n
        self.a(f"s_waitcnt vmcnt({n})")
    def lg_issue(self, tag): self.lgq.append(tag)
    def lg_wait(self, tag):
        idx = max(i for i, t in enumerate(self.lgq) if t == tag)
        n = len(self.lgq) - 1 - idx
        assert n <= 15, n
        self.a(f"s_waitcnt lgkmcnt({n})")

    def gather_stats(self, sbase, st_sgpr, poll):
        a = self.a
        G = 16
        a("v_and_b32 v2, 31, v1")
        a("v_lshlrev_b32 v2, 3, v2")
        a("v_lshrrev_b32 v3, 5, v1")
        a("v_lshlrev_b32 v3, 17, v3")
        a("v_add_u32 v2, v2, v3")
        a(f"s_lshl_b32 s{sT3}, {st_sgpr}, 8")
        a(f"s_add_u32 s{sT3}, s{sT3}, {sbase}")
        lp = self.lbl("gs"); ok = self.lbl("gsok")
        if poll:
            a(f"s_mov_b32 s{sSPIN}, 0")
            a.label(lp)
        a(f"s_mov_b32 s{sT4}, s{sT3}")
        for e in range(8):
            a(f"buffer_load_dwordx2 v[{G+2*e}:{G+2*e+1}], v2, {srd(WS)}, s{sT4} offen sc1")
            if e < 7: a(f"s_add_u32 s{sT4}, s{sT4}, 16384")
        if poll:
            a("s_waitcnt vmcnt(0)")
            a(f"v_and_b32 v3, v{G+1}, v{G+3}")
            for e in range(2, 8): a(f"v_and_b32 v3, v3, v{G+2*e+1}")
            a("v_and_b32 v3, 1, v3")
            a("v_cmp_eq_u32 vcc, 1, v3")
            a(f"s_add_u32 s{sSPIN}, s{sSPIN}, 1")
            a("s_nop 0")
            a("s_cmp_eq_u64 vcc, -1")
            a(f"s_cbranch_scc1 {ok}")
            a(f"s_cmp_lt_u32 s{sSPIN}, {SPIN_LIMIT}")
            a(f"s_cbranch_scc1 {lp}")
            a.label(ok)
    def finish_stats(self):
        a = self.a
        G = 16
        a(f"v_add_f32 v8, v{G}, v{G+2}")
        a(f"v_add_f32 v9, v{G+1}, v{G+3}")
        for e in range(2, 8):
            a(f"v_add_f32 v8, v8, v{G+2*e}")
            a(f"v_add_f32 v9, v9, v{G+2*e+1}")
        a("v_mov_b32 v11, v8")
        a("v_mov_b32 v12, v9")
        a("s_nop 1")
        a("v_permlane32_swap_b32 v8, v11")
        a("v_permlane32_swap_b32 v9, v12")
        a("s_nop 0")
        a("v_add_f32 v8, v8, v11")
        a("v_add_f32 v9, v9, v12")
        a("v_mul_f32 v8, 0xbb000000, v8")
        a("v_mul_f32 v9, 0x3b000000, v9")
        a("v_fma_f32 v9, -v8, v8, v9")
        a("v_max_f32 v9, 0, v9")
        a("v_add_f32 v9, 0x3727c5ac, v9")

    def atail(self):
        a = self.a
        self.gather_stats(f"s{sSTS}", f"s{sST32}", poll=True)
        self.finish_stats()
        a("v_rsq_f32 v10, v9")
        X = 128; P = 16; T = 32
        for e in range(8): a(f"v_accvgpr_read_b32 v{P+e}, a{224+e}")
        a("v_mul_f32 v8, v8, v10")
        for e in range(8):
            a(f"v_lshlrev_b32 v{T+2*e}, 16, v{P+e}")
            a(f"v_and_b32 v{T+2*e+1}, 0xffff0000, v{P+e}")
        for e in range(8):
            a(f"v_pk_fma_f32 v[{48+2*e}:{48+2*e+1}], v[{X+2*e}:{X+2*e+1}], v[10:11], v[8:9] op_sel_hi:[1,0,0]")
        for e in range(8):
            a(f"v_pk_fma_f32 v[{X+2*e}:{X+2*e+1}], v[{48+2*e}:{48+2*e+1}], v[{T+2*e}:{T+2*e+1}], v[{X+2*e}:{X+2*e+1}]")
        for e in range(8):
            a(f"v_cvt_pk_bf16_f32 v{P+e}, v{X+2*e}, v{X+2*e+1}")
        a("v_lshlrev_b32 v2, 4, v1")
        a(f"s_lshl_b32 s{sT3}, s{sST32}, 15")
        a(f"s_lshl_b32 s{sT4}, s{sDT32}, 11")
        a(f"s_add_u32 s{sT3}, s{sT3}, s{sT4}")
        a(f"s_add_u32 s{sT3}, s{sT3}, s{sXF}")
        a(f"buffer_store_dwordx4 v[{P}:{P+3}], v2, {srd(WS)}, s{sT3} offen sc1")
        a(f"buffer_store_dwordx4 v[{P+4}:{P+7}], v2, {srd(WS)}, s{sT3} offen offset:1024 sc1")
        for e in range(8): a(f"v_accvgpr_write_b32 a{232+e}, v{P+e}")
        a("v_mov_b32 v10, 0x3f803f80")
        a("v_mov_b32 v8, 0")
        a("v_mov_b32 v9, 0")
        for e in range(8):
            a(f"v_dot2_f32_bf16 v8, v{P+e}, v10, v8")
            a(f"v_dot2_f32_bf16 v9, v{P+e}, v{P+e}, v9")
        self.stat_store(8, 9, f"s{sSTX}")
        a(f"s_lshr_b32 s{sT5}, s{sRB64}, 1")
        a(f"s_add_u32 s{sT5}, s{sT5}, s{sCX}")
        self.arrive(f"s{sT5}")

    def gemm1(self):
        a = self.a
        self.vmq = []; self.lgq = []
        XB = 16; ACC = 128; AST = 192; CSR = 224; TMP = 240; OUTQ = 248
        def xfrag(j):
            return f"v[{XB+4*j}:{XB+4*j+3}]" if j < 28 else f"a[{240+4*(j-28)}:{240+4*(j-28)+3}]"
        hs = {(0,0):0,(1,0):1,(2,0):2,(0,1):3,(1,1):4,(2,1):5,(3,0):6,(3,1):7,
              (4,0):0,(4,1):1,(5,0):2,(5,1):3,(6,0):4,(6,1):5}
        a("v_lshlrev_b32 v2, 4, v1")
        a(f"s_mul_i32 s{sU0}, s{sFS}, {7*32*1024}")
        a(f"s_lshl_b32 s{sU1}, s{sW}, 12")
        a(f"s_add_u32 s{sU0}, s{sU0}, s{sU1}")
        a(f"s_add_u32 s{sU0}, s{sU0}, {W1F}")
        def dma(tile, half):
            ops = []
            g = tile*32768 + half*16384
            l = RING + hs[(tile,half)]*16384
            def one(i):
                if i == 0:
                    a(f"s_add_u32 m0, s{sU1}, {l}")
                    a(f"s_add_u32 s{sU2}, s{sU0}, {g}")
                a(f"buffer_load_dwordx4 v2, {srd(WS)}, s{sU2} offen offset:{i*1024} sc1 lds")
                self.vm_issue(('dma', tile, half))
            return [lambda i=i: one(i) for i in range(4)]
        for (t, h) in [(0,0),(1,0),(2,0),(0,1),(1,1),(2,1),(3,0),(3,1)]:
            for f in dma(t, h): f()
        csk = self.lbl("cs")
        a(f"s_cmp_lg_u32 s{sLAYER}, 0")
        a(f"s_cbranch_scc1 {csk}")
        a("v_cmp_gt_u32 vcc, 224, v0")
        a("s_nop 0")
        a("s_and_saveexec_b64 s[52:53], vcc")
        a("v_lshrrev_b32 v3, 5, v0")
        a("v_and_b32 v4, 31, v0")
        a("v_lshlrev_b32 v5, 8, v3")
        a("v_lshlrev_b32 v6, 2, v4")
        a("v_add_u32 v5, v5, v6")
        a(f"s_mul_i32 s{sT3}, s{sFS}, {7*256}")
        a(f"s_add_u32 s{sT3}, s{sT3}, {CSP}")
        for kg in range(8):
            a(f"buffer_load_dword v{16+2*kg}, v5, {srd(WS)}, s{sT3} offen sc1")
            a(f"buffer_load_dword v{17+2*kg}, v5, {srd(WS)}, s{sT3} offen offset:128 sc1")
            if kg < 7: a(f"s_add_u32 s{sT3}, s{sT3}, {112*256}")
        a("s_waitcnt vmcnt(0)")
        a("v_add_f32 v16, v16, v17")
        for k in range(2, 16): a(f"v_add_f32 v16, v16, v{16+k}")
        a("v_lshlrev_b32 v5, 2, v0")
        a(f"v_add_u32 v5, {CST}, v5")
        a("ds_write_b32 v5, v16")
        a("s_mov_b64 exec, s[52:53]")
        a.label(csk)
        a(f"s_add_u32 s{sT5}, s{sRB128}, s{sCX}")
        skip = self.lbl("wt"); lp = self.lbl("poll"); ok = self.lbl("pollok")
        a(f"s_cmp_lg_u32 s{sW}, 0")
        a(f"s_cbranch_scc1 {skip}")
        a("s_mov_b64 exec, 1")
        a(f"s_lshl_b32 s{sT0}, s{sT5}, 8")
        a(f"v_mov_b32 v4, s{sT0}")
        a(f"s_mov_b32 s{sSPIN}, 0")
        a.label(lp)
        a(f"buffer_load_dword v3, v4, {srd(WS)}, 0 offen sc1")
        a("s_waitcnt vmcnt(0)")
        a(f"v_cmp_le_u32 vcc, 16, v3")
        a(f"s_add_u32 s{sSPIN}, s{sSPIN}, 1")
        a("s_nop 0")
        a(f"s_cmp_eq_u64 vcc, 1")
        a(f"s_cbranch_scc1 {ok}")
        a(f"s_cmp_lt_u32 s{sSPIN}, {SPIN_LIMIT}")
        a(f"s_cbranch_scc1 {lp}")
        a.label(ok)
        a("s_mov_b64 exec, -1")
        a.label(skip)
        a("s_waitcnt vmcnt(0) lgkmcnt(0)")
        a("s_barrier")
        self.vmq = []; self.lgq = []
        a(f"s_lshl_b32 s{sU3}, s{sRB128}, 2")
        a(f"s_add_u32 s{sU3}, s{sU3}, s{sW}")
        a("v_and_b32 v3, 31, v1")
        a("v_lshlrev_b32 v3, 3, v3")
        a("v_lshrrev_b32 v4, 5, v1")
        a("v_lshlrev_b32 v4, 17, v4")
        a("v_add_u32 v3, v3, v4")
        a(f"s_lshl_b32 s{sT3}, s{sU3}, 8")
        a(f"s_add_u32 s{sT3}, s{sT3}, s{sSTX}")
        for e in range(8):
            a(f"buffer_load_dwordx2 v[{CSR+2*e}:{CSR+2*e+1}], v3, {srd(WS)}, s{sT3} offen sc1")
            self.vm_issue('stat')
            if e < 7: a(f"s_add_u32 s{sT3}, s{sT3}, 16384")
        a(f"s_lshl_b32 s{sT3}, s{sU3}, 15")
        a(f"s_add_u32 s{sT3}, s{sT3}, s{sXF}")
        for j in range(32):
            a(f"buffer_load_dwordx4 {xfrag(j)}, v2, {srd(WS)}, s{sT3} offen offset:{(j&3)*1024} sc1")
            self.vm_issue(('x', j))
            if j & 3 == 3 and j < 31: a(f"s_add_u32 s{sT3}, s{sT3}, 4096")
        a("v_mov_b32 v4, v2")
        a("v_add_u32 v5, 0x10000, v2")
        a("v_lshrrev_b32 v6, 5, v1")
        a("v_lshlrev_b32 v6, 4, v6")
        a(f"v_add_u32 v6, {CST}, v6")
        a(f"s_mul_i32 s{sU3}, s{sU3}, {112*1024}")
        a(f"s_mul_i32 s{sT3}, s{sFS}, {7*1024}")
        a(f"s_add_u32 s{sU3}, s{sU3}, s{sT3}")
        a(f"s_add_u32 s{sU3}, s{sU3}, s{sHF}")
        seq = []
        for j in range(32):
            for t in range(3): seq.append((t, j))
        for t in range(3, 7):
            for j in range(32): seq.append((t, j))
        N = len(seq)
        accof = {0:0,1:1,2:2,3:3,4:0,5:1,6:2}
        def aread(n):
            t, j = seq[n]
            h = hs[(t, j >> 4)]
            off = h*16384 + (j & 15)*1024
            base = 'v4' if h < 4 else 'v5'
            if h >= 4: off -= 65536
            st = AST + 4*(n % 8)
            a(f"ds_read_b128 v[{st}:{st+3}], {base} offset:{off}")
            self.lg_issue(('A', n))
        def epi(t):
            A = ACC + 16*accof[t]
            L = []
            def I(s): L.append(lambda s=s: a(s))
            def cs_reads():
                for jj in range(4):
                    def f(jj=jj):
                        a(f"ds_read_b128 v[{CSR+4*jj}:{CSR+4*jj+3}], v6 offset:{t*128 + jj*32}")
                        self.lg_issue(('cs', t))
                    L.append(f)
            cs_reads()
            L.append(lambda: self.lg_wait(('cs', t)))
            for p in range(8):
                I(f"v_pk_fma_f32 v[{A+2*p}:{A+2*p+1}], v[{CSR+2*p}:{CSR+2*p+1}], v[8:9], v[{A+2*p}:{A+2*p+1}] op_sel_hi:[1,0,1]")
            for p in range(4): I(f"v_pk_mul_f32 v[{TMP+2*p}:{TMP+2*p+1}], v[{A+2*p}:{A+2*p+1}], v[{A+2*p}:{A+2*p+1}]")
            for p in range(4): I(f"v_pk_fma_f32 v[{TMP+2*p}:{TMP+2*p+1}], v[{TMP+2*p}:{TMP+2*p+1}], v[12:13], v[10:11] op_sel_hi:[1,0,0]")
            for p in range(4): I(f"v_pk_mul_f32 v[{TMP+2*p}:{TMP+2*p+1}], v[{TMP+2*p}:{TMP+2*p+1}], v[{A+2*p}:{A+2*p+1}]")
            for k in range(8): I(f"v_exp_f32 v{TMP+k}, v{TMP+k}")
            for p in range(4): I(f"v_pk_mul_f32 v[{A+8+2*p}:{A+8+2*p+1}], v[{A+8+2*p}:{A+8+2*p+1}], v[{A+2*p}:{A+2*p+1}]")
            for p in range(4): I(f"v_pk_fma_f32 v[{TMP+2*p}:{TMP+2*p+1}], v[{TMP+2*p}:{TMP+2*p+1}], v[14:15], v[14:15] op_sel_hi:[1,0,0]")
            for k in range(8): I(f"v_rcp_f32 v{TMP+k}, v{TMP+k}")
            I("s_nop 0")
            for p in range(4): I(f"v_pk_mul_f32 v[{A+8+2*p}:{A+8+2*p+1}], v[{A+8+2*p}:{A+8+2*p+1}], v[{TMP+2*p}:{TMP+2*p+1}]")
            for p in range(4): I(f"v_cvt_pk_bf16_f32 v{OUTQ+p}, v{A+8+2*p}, v{A+8+2*p+1}")
            def st():
                a(f"s_add_u32 s{sT3}, s{sU3}, {t*1024}")
                a(f"buffer_store_dwordx4 v[{OUTQ}:{OUTQ+3}], v2, {srd(WS)}, s{sT3} offen sc1")
                self.vm_issue(('h', t))
            L.append(st)
            return L
        def stats_code():
            L = []
            def I(s): L.append(lambda s=s: a(s))
            L.append(lambda: self.vm_wait('stat'))
            G = CSR
            I(f"v_add_f32 v8, v{G}, v{G+2}")
            I(f"v_add_f32 v9, v{G+1}, v{G+3}")
            for e in range(2, 8):
                I(f"v_add_f32 v8, v8, v{G+2*e}")
                I(f"v_add_f32 v9, v9, v{G+2*e+1}")
            I("v_mov_b32 v11, v8"); I("v_mov_b32 v12, v9"); I("s_nop 1")
            I("v_permlane32_swap_b32 v8, v11"); I("v_permlane32_swap_b32 v9, v12"); I("s_nop 0")
            I("v_add_f32 v8, v8, v11"); I("v_add_f32 v9, v9, v12")
            I("v_mul_f32 v8, 0xbb000000, v8"); I("v_mul_f32 v9, 0x3b000000, v9")
            I("v_fma_f32 v9, -v8, v8, v9"); I("v_max_f32 v9, 0, v9")
            I("v_add_f32 v14, 0x3727c5ac, v9")
            I("v_rsq_f32 v9, v14"); I("s_nop 0")
            I("v_mul_f32 v10, 0xc0135761, v9")
            I("v_mul_f32 v12, v9, v9")
            I("v_mul_f32 v12, v12, v9")
            I("v_mul_f32 v12, 0xbdd2d3e8, v12")
            return L
        fill = []
        for f in stats_code(): fill.append((f, 6))
        n_last = {t: max(n for n,(tt,j) in enumerate(seq) if tt == t) for t in range(7)}
        epis = {t: None for t in range(7)}
        for n in range(6): aread(n)
        PF = 6
        fillq = list(fill)
        epi_started = set()
        rate_acc = 0.0
        dmaq = []
        for n in range(N):
            t, j = seq[n]
            if n == 48:
                a("s_barrier")
                for (tt, hh) in [(4,0),(4,1),(5,0)]: dmaq += dma(tt, hh)
            if n == 96:
                a("s_barrier")
                for (tt, hh) in [(5,1),(6,0),(6,1)]: dmaq += dma(tt, hh)
            if n == 120:
                assert not any(True for _ in [])
                self.vm_wait(('dma', 5, 0)); a("s_barrier")
            if n == 165:
                self.vm_wait(('dma', 6, 1)); a("s_barrier")
            if t < 3 and (n % 3 == 0): self.vm_wait(('x', j))
            if n % 2 == 0:
                self.lg_wait(('A', min(n+1, N-1)))
            acc = ACC + 16*accof[t]
            st = AST + 4*(n % 8)
            if j == 0 and t >= 4:
                prev = t - 4
                assert prev in epi_started and (prev+1 in epi_started or not fillq), ("epilogue deadline", t)
            c = f"v[{acc}:{acc+15}]" if j > 0 else "0"
            a(f"v_mfma_f32_32x32x16_bf16 v[{acc}:{acc+15}], v[{st}:{st+3}], {xfrag(j)}, {c}")
            if n + PF < N: aread(n + PF)
            if dmaq: dmaq.pop(0)()
            if n < 96:
                k = 2
                while k and fillq and fillq[0][1] <= n:
                    fillq.pop(0)[0](); k -= 1
            else:
                for tt in range(6):
                    if tt not in epi_started and n >= max(96, n_last[tt] + 2) and (tt == 0 or (tt-1) in epi_started):
                        if not fillq or tt == 0:
                            assert not (tt == 0 and fillq), "stats code must be done before n=96"
                            fillq += [(f, n) for f in epi(tt)]
                            epi_started.add(tt)
                rate_acc += 2.95
                while rate_acc >= 1.0 and fillq:
                    fillq.pop(0)[0](); rate_acc -= 1.0
                if not fillq: rate_acc = min(rate_acc, 1.0)
        assert not dmaq
        while fillq: fillq.pop(0)[0]()
        for tt in range(6): assert tt in epi_started, tt
        a("s_nop 7"); a("s_nop 3")
        for f in epi(6): f()
        a(f"s_add_u32 s{sT5}, s{sRB128}, s{sCH}")
        self.arrive(f"s{sT5}")

    def gemm2(self):
        a = self.a
        self.vmq = []; self.lgq = []
        ACC = 128
        a("v_lshlrev_b32 v2, 4, v1")
        wsk = self.lbl("wd")
        a(f"s_cmp_lg_u32 s{sLAYER}, 0")
        a(f"s_cbranch_scc1 {wsk}")
        a(f"s_mul_i32 s{sT3}, s{sDT32}, {112*1024}")
        a(f"s_xor_b32 s{sT4}, s{sDT32}, 1")
        a(f"s_mul_i32 s{sT4}, s{sT4}, {112*1024}")
        a(f"s_mul_i32 s{sT5}, s{sW}, {28*1024}")
        a(f"s_add_u32 s{sT5}, s{sT5}, {WDF}")
        a(f"s_add_u32 s{sT3}, s{sT3}, s{sT5}")
        a(f"s_add_u32 s{sT4}, s{sT4}, s{sT5}")
        for jp in range(28):
            a(f"buffer_load_dwordx4 a[{8*jp}:{8*jp+3}], v2, {srd(WS)}, s{sT3} offen offset:{(jp&3)*1024} sc1")
            a(f"buffer_load_dwordx4 a[{8*jp+4}:{8*jp+7}], v2, {srd(WS)}, s{sT4} offen offset:{(jp&3)*1024} sc1")
            if jp & 3 == 3:
                a(f"s_add_u32 s{sT3}, s{sT3}, 4096"); a(f"s_add_u32 s{sT4}, s{sT4}, 4096")
        a.label(wsk)
        a(f"s_lshr_b32 s{sT5}, s{sRB64}, 1")
        a(f"s_add_u32 s{sT5}, s{sT5}, s{sCH}")
        skip = self.lbl("wt"); lp = self.lbl("poll"); ok = self.lbl("pollok")
        a(f"s_cmp_lg_u32 s{sW}, 0")
        a(f"s_cbranch_scc1 {skip}")
        a("s_mov_b64 exec, 1")
        a(f"s_lshl_b32 s{sT0}, s{sT5}, 8")
        a(f"v_mov_b32 v4, s{sT0}")
        a(f"s_mov_b32 s{sSPIN}, 0")
        a.label(lp)
        a(f"buffer_load_dword v3, v4, {srd(WS)}, 0 offen sc1")
        a("s_waitcnt vmcnt(0)")
        a(f"v_cmp_le_u32 vcc, 16, v3")
        a(f"s_add_u32 s{sSPIN}, s{sSPIN}, 1")
        a("s_nop 0")
        a(f"s_cmp_eq_u64 vcc, 1")
        a(f"s_cbranch_scc1 {ok}")
        a(f"s_cmp_lt_u32 s{sSPIN}, {SPIN_LIMIT}")
        a(f"s_cbranch_scc1 {lp}")
        a.label(ok)
        a("s_mov_b64 exec, -1")
        a.label(skip)
        a("s_waitcnt vmcnt(0)")
        a("s_barrier")
        a(f"s_mul_i32 s{sU0}, s{sST32}, {112*1024}")
        a(f"s_xor_b32 s{sU1}, s{sST32}, 1")
        a(f"s_mul_i32 s{sU1}, s{sU1}, {112*1024}")
        a(f"s_mul_i32 s{sT5}, s{sW}, {28*1024}")
        a(f"s_add_u32 s{sT5}, s{sT5}, s{sHF}")
        a(f"s_add_u32 s{sU0}, s{sU0}, s{sT5}")
        a(f"s_add_u32 s{sU1}, s{sU1}, s{sT5}")
        def slot(i):
            k = i if i < 44 else i - 44
            return (16 + 4*k) if k < 28 else (192 + 4*(k-28))
        def hload(i):
            jp, k = i >> 1, i & 1
            sb = sU0 if k == 0 else sU1
            r = slot(i)
            a(f"buffer_load_dwordx4 v[{r}:{r+3}], v2, {srd(WS)}, s{sb} offen offset:{(jp&3)*1024} sc1")
            self.vm_issue(('h', i))
            if k == 1 and (jp & 3) == 3:
                a(f"s_add_u32 s{sU0}, s{sU0}, 4096"); a(f"s_add_u32 s{sU1}, s{sU1}, 4096")
        for i in range(44): hload(i)
        nxt = 44
        for jp in range(28):
            self.vm_wait(('h', 2*jp+1))
            r0, r1 = slot(2*jp), slot(2*jp+1)
            for k in range(4):
                aa = 8*jp + 4*(k >> 1)
                bb = r0 if (k & 1) == 0 else r1
                acc = ACC + 16*k
                c = f"v[{acc}:{acc+15}]" if jp > 0 else "0"
                a(f"v_mfma_f32_32x32x16_bf16 v[{acc}:{acc+15}], a[{aa}:{aa+3}], v[{bb}:{bb+3}], {c}")
            if nxt < 56 and jp < 6:
                hload(nxt); hload(nxt+1); nxt += 2
        assert nxt == 56
        a("s_nop 7"); a("s_nop 3")
        for k in range(1, 4):
            a(f"s_xor_b32 s{sT3}, s{sW}, {k}")
            a(f"s_mul_i32 s{sT3}, s{sT3}, {3*4096}")
            a(f"s_add_u32 s{sT3}, s{sT3}, {RED + (k-1)*4096}")
            a(f"v_add_u32 v3, s{sT3}, v2")
            for q in range(4):
                a(f"ds_write_b128 v3, v[{ACC+16*k+4*q}:{ACC+16*k+4*q+3}] offset:{q*1024}")
        a("s_waitcnt lgkmcnt(0)")
        a("s_barrier")
        a(f"s_mul_i32 s{sT3}, s{sW}, {3*4096}")
        a(f"s_add_u32 s{sT3}, s{sT3}, {RED}")
        a(f"v_add_u32 v3, s{sT3}, v2")
        for k in range(3):
            for q in range(4):
                a(f"ds_read_b128 v[{16+16*k+4*q}:{16+16*k+4*q+3}], v3 offset:{k*4096+q*1024}")
        for e in range(8): a(f"v_accvgpr_read_b32 v{64+e}, a{232+e}")
        for e in range(8):
            a(f"v_lshlrev_b32 v{72+2*e}, 16, v{64+e}")
            a(f"v_and_b32 v{72+2*e+1}, 0xffff0000, v{64+e}")
        a("s_waitcnt lgkmcnt(0)")
        for k in range(3):
            for p in range(8):
                a(f"v_pk_add_f32 v[{ACC+2*p}:{ACC+2*p+1}], v[{ACC+2*p}:{ACC+2*p+1}], v[{16+16*k+2*p}:{16+16*k+2*p+1}]")
        for p in range(8):
            a(f"v_pk_add_f32 v[{ACC+2*p}:{ACC+2*p+1}], v[{ACC+2*p}:{ACC+2*p+1}], v[{72+2*p}:{72+2*p+1}]")

    def ffn(self):
        a = self.a
        a("v_and_b32 v2, 31, v1")
        a("v_lshlrev_b32 v2, 2, v2")
        a("v_lshrrev_b32 v3, 5, v1")
        a("v_lshlrev_b32 v3, 15, v3")
        a("v_add_u32 v2, v2, v3")
        a(f"s_lshl_b32 s{sT3}, s{sDT32}, 17")
        a(f"s_lshl_b32 s{sT4}, s{sST32}, 7")
        a(f"s_add_u32 s{sT3}, s{sT3}, s{sT4}")
        a(f"s_add_u32 s{sT3}, s{sT3}, {YP}")
        for e in range(8):
            off = (e & 3)*8192 + (e >> 2)*8*8192
            a(f"s_add_u32 s{sT4}, s{sT3}, {off}")
            a(f"buffer_load_dword a{224+e}, v2, {srd(WS)}, s{sT4} offen sc1")
        for e in range(8):
            a(f"v_lshlrev_b32 v{128+2*e}, 16, v{64+e}")
            a(f"v_and_b32 v{128+2*e+1}, 0xffff0000, v{64+e}")
        a(f"s_mov_b32 s{sLAYER}, 0")
        a(f"s_mov_b32 s{sXF}, {XF0}"); a(f"s_mov_b32 s{sHF}, {HF0}")
        a(f"s_mov_b32 s{sSTS}, {STAT0}"); a(f"s_mov_b32 s{sSTX}, {STATX0}")
        a(f"s_mov_b32 s{sCX}, {C_X0}"); a(f"s_mov_b32 s{sCH}, {C_H0}")
        a.label("L_layer")
        self.atail()
        if self.stop_after == 'atail0': return
        self.gemm1()
        if self.stop_after == 'gemm1_0': return
        self.gemm2()
        a(f"s_cmp_lg_u32 s{sLAYER}, 0")
        a("s_cbranch_scc1 L_final")
        a("v_mov_b32 v8, 0"); a("v_mov_b32 v9, 0")
        for k in range(16):
            a(f"v_add_f32 v8, v8, v{128+k}")
            a(f"v_fmac_f32 v9, v{128+k}, v{128+k}")
        self.stat_store(8, 9, STAT2, tag=True)
        a(f"s_mov_b32 s{sLAYER}, 1")
        a(f"s_mov_b32 s{sXF}, {XF1}"); a(f"s_mov_b32 s{sHF}, {HF1}")
        a(f"s_mov_b32 s{sSTS}, {STAT2}"); a(f"s_mov_b32 s{sSTX}, {STATX1}")
        a(f"s_mov_b32 s{sCX}, {C_X1}"); a(f"s_mov_b32 s{sCH}, {C_H1}")
        a("s_branch L_layer")
        a.label("L_final")
        for e in range(8):
            a(f"v_cvt_pk_bf16_f32 v{16+e}, v{128+2*e}, v{128+2*e+1}")
        a("v_and_b32 v2, 31, v1")
        a("v_lshlrev_b32 v2, 10, v2")
        a("v_lshrrev_b32 v3, 5, v1")
        a("v_lshlrev_b32 v3, 4, v3")
        a("v_add_u32 v2, v2, v3")
        a(f"s_lshl_b32 s{sT3}, s{sST32}, 15")
        a(f"s_lshl_b32 s{sT4}, s{sDT32}, 6")
        a(f"s_add_u32 s{sT3}, s{sT3}, s{sT4}")
        a(f"buffer_store_dwordx4 v[16:19], v2, {srd(OUT)}, s{sT3} offen")
        a(f"buffer_store_dwordx4 v[20:23], v2, {srd(OUT)}, s{sT3} offen offset:32")

    def build(self):
        a = self.a
        self.prologue()
        self.p0()
        self.conv()
        if self.stop_after != 'conv':
            self.ffn()
        a.label("L_end")
        a("s_endpgm")
        return self.a.text()

HEADER = open(__file__.replace('gen.py','header.txt')).read()
def full_text(body, vgpr=512, acc=256):
    t = HEADER
    t += f"; @launch grid=(256,1,1) block=(256,1,1) lds={LDS_SIZE}\n"
    t += '.amdgcn_target "amdgcn-amd-amdhsa--gfx950"\n.text\n'
    t += f".globl {NAME}\n.p2align 8\n.type {NAME},@function\n{NAME}:\n"
    t += body
    t += f""".section .rodata,"a"
.p2align 6
.amdhsa_kernel {NAME}
  .amdhsa_next_free_vgpr {vgpr}
  .amdhsa_next_free_sgpr 96
  .amdhsa_accum_offset {acc}
  .amdhsa_group_segment_fixed_size 0
  .amdhsa_kernarg_size 104
  .amdhsa_user_sgpr_count 2
  .amdhsa_user_sgpr_kernarg_segment_ptr 1
  .amdhsa_system_sgpr_workgroup_id_x 1
  .amdhsa_float_denorm_mode_32 3
.end_amdhsa_kernel
"""
    return t

if __name__ == "__main__":
    out = sys.argv[1] if len(sys.argv) > 1 else "out.s"
    g = Gen(stop_after=(sys.argv[2] if len(sys.argv) > 2 else None))
    body = g.build()
    probs = check_hazards(body)
    open(out, "w").write(full_text(body))
    print("written", out, "lines", body.count('\n'), "hazards", len(probs))
```
